```python
import torch

def _softmax(x, axis=-1):
    return torch.softmax(x, dim=axis)

def _gelu(x):
    return torch.nn.functional.gelu(x, approximate='tanh')

def _silu(x):
    return torch.nn.functional.silu(x)

def _sigmoid(x):
    return torch.sigmoid(x)

def _layernorm(x, axis=-1, eps=1e-05):
    m = x.mean(dim=axis, keepdim=True)
    v = x.var(dim=axis, keepdim=True, unbiased=False)
    return (x - m) / torch.sqrt(v + eps)

def _scatter_add(tgt, idx, src, axis=0):
    return tgt.clone().index_add_(axis, idx, src)

def _segment_sum(src, seg, n):
    out = torch.zeros((n,) + src.shape[1:], dtype=src.dtype)
    return out.index_add_(0, seg, src)

def _pad(x, pw):
    flat = tuple((v for pair in reversed(pw) for v in pair))
    return torch.nn.functional.pad(x, flat)
kernel_name = 'parallel_sum__linear_kernel_hedgehog__mixer_gmlp__prompt'

def setup_inputs():

    _w = lambda a: (lambda t: t.to(torch.bfloat16) if t.is_floating_point() else t)(torch.as_tensor(a))

    def _A_setup():
        B, S, D, H = (1, 2048, 512, 32)
        Dh = D // H
        return {'x': _w((lambda *s: torch.randn(*s, dtype=torch.bfloat16) * 0.05)(B, S, D)), 'wqkv': _w((lambda *s: torch.randn(*s, dtype=torch.bfloat16) * 0.8)(D, 3 * D)), 'w_phi': _w((lambda *s: torch.randn(*s, dtype=torch.bfloat16) * 0.8)(H, Dh, Dh) * Dh ** (-0.5)), 'wo': _w((lambda *s: torch.randn(*s, dtype=torch.bfloat16) * 0.1)(D, D))}
    _A_in = _A_setup()

    def _B_setup():
        B, S, D, F = (1, 2048, 512, 1376)
        Fh = F // 2
        return {'x': _w((lambda *s: torch.randn(*s, dtype=torch.bfloat16) * 0.05)(B, S, D)), 'w_in': _w((lambda *s: torch.randn(*s, dtype=torch.bfloat16) * 0.4)(D, 2 * Fh)), 'w_sp': _w(0.01 * (lambda *s: torch.randn(*s, dtype=torch.bfloat16) * 0.4)(S, S)), 'b_sp': _w(1.0 + 0.01 * (lambda *s: torch.randn(*s, dtype=torch.bfloat16) * 0.05)(S)), 'w_out': _w((lambda *s: torch.randn(*s, dtype=torch.bfloat16) * 0.05)(Fh, D))}
    _B_in = _B_setup()
    return {'A_x': _A_in['x'], 'A_wqkv': _A_in['wqkv'], 'A_w_phi': _A_in['w_phi'], 'A_wo': _A_in['wo'], 'B_x': _B_in['x'], 'B_w_in': _B_in['w_in'], 'B_w_sp': _B_in['w_sp'], 'B_b_sp': _B_in['b_sp'], 'B_w_out': _B_in['w_out']}

def reference(A_x, A_wqkv, A_w_phi, A_wo, B_x, B_w_in, B_w_sp, B_b_sp, B_w_out):

    def _A_ref(x, wqkv, w_phi, wo):
        B, S, D = x.shape
        H = 32
        Dh = D // H
        qkv = (lambda x, *d: x.permute(*d))((x @ wqkv).reshape(B, S, 3, H, Dh), 2, 0, 3, 1, 4)
        q, k, v = (qkv[0], qkv[1], qkv[2])
        pq = torch.einsum('bhsd,hdf->bhsf', q, w_phi)
        pk = torch.einsum('bhsd,hdf->bhsf', k, w_phi)
        phi_q = torch.concatenate([_softmax(pq, axis=-1), _softmax(-pq, axis=-1)], axis=-1)
        phi_k = torch.concatenate([_softmax(pk, axis=-1), _softmax(-pk, axis=-1)], axis=-1)
        kv = torch.einsum('bhsf,bhsd->bhfd', phi_k, v)
        z = torch.einsum('bhsf->bhf', phi_k)
        num = torch.einsum('bhqf,bhfd->bhqd', phi_q, kv)
        den = torch.einsum('bhqf,bhf->bhq', phi_q, z)[..., None] + 1e-06
        o = num / den
        return (lambda x, *d: x.permute(*d))(o, 0, 2, 1, 3).reshape(B, S, D) @ wo

    def _B_ref(x, w_in, w_sp, b_sp, w_out):
        B, S, D = x.shape
        F = w_in.shape[-1]
        Fh = F // 2
        z = _gelu(torch.einsum('bsd,df->bsf', x, w_in))
        z1 = z[..., :Fh].clone()
        z2 = _layernorm(z[..., Fh:], axis=-1)
        g = torch.einsum('ts,bsf->btf', w_sp, z2) + b_sp[None, :, None]
        return torch.einsum('bsf,fd->bsd', z1 * g, w_out)
    x = A_x
    xn = _layernorm(x, axis=-1)
    return x + _A_ref(xn, A_wqkv, A_w_phi, A_wo) + _B_ref(xn, B_w_in, B_w_sp, B_b_sp, B_w_out)
```

```python
import struct
NAME = "parallel_sum__linear_kernel_hedgehog__mixer_gmlp__prompt"
MB = 1 << 20
WS_PHIQ = 0
WS_Z1 = 4 * MB
WS_Z2T = 8 * MB
WS_STATS = 12 * MB
WS_KVP = 13 * MB
WS_AO = 16 * MB
WS_WT = 24 * MB
LOG2E = 1.4426950408889634

def f2u(x):
    return "0x%08x" % struct.unpack("<I", struct.pack("<f", x))[0]

class E:
    def __init__(self):
        self.L = []
    def __call__(self, s):
        for l in s.strip().split("\n"):
            self.L.append("    " + l.strip())
    def label(self, s):
        self.L.append(s + ":")
    def text(self):
        return "\n".join(self.L) + "\n"

def vr(b, n):
    return "v[%d:%d]" % (b, b + n - 1)
def ar(b, n):
    return "a[%d:%d]" % (b, b + n - 1)

def srd(e, d, ptr, off, size):
    if off:
        e(f"s_add_u32 s{d}, s{ptr}, {off}")
        e(f"s_addc_u32 s{d+1}, s{ptr+1}, 0")
    else:
        e(f"s_mov_b32 s{d}, s{ptr}")
        e(f"s_mov_b32 s{d+1}, s{ptr+1}")
    e(f"s_mov_b32 s{d+2}, {size}")
    e(f"s_mov_b32 s{d+3}, 0x00020000")

def interleave(e, main, fill, per):
    fi = 0
    for m in main:
        e(m)
        for _ in range(per):
            if fi < len(fill):
                e(fill[fi]); fi += 1
    while fi < len(fill):
        e(fill[fi]); fi += 1

def kernel_begin(e, name):
    e.L.append(f".globl {name}\n.p2align 8\n.type {name},@function")
    e.label(name)

def desc(name, nv, acc, ns=102):
    return f""".p2align 6
.amdhsa_kernel {name}
  .amdhsa_next_free_vgpr {nv}
  .amdhsa_next_free_sgpr {ns}
  .amdhsa_accum_offset {acc}
  .amdhsa_group_segment_fixed_size 0
  .amdhsa_kernarg_size 96
  .amdhsa_user_sgpr_count 2
  .amdhsa_user_sgpr_kernarg_segment_ptr 1
  .amdhsa_system_sgpr_workgroup_id_x 1
.end_amdhsa_kernel
"""

import os
X=os.environ.get('X','')
def TM(e, k, r):
    if 't' in X: e(f"s_memtime s[84:85]\ns_waitcnt lgkmcnt(0)\nv_writelane_b32 v{r}, s84, {k}")
def TEND(e, r, kid, ptr=16):
    if 't' in X:
        TM(e, 15, r)
        srd(e, 84, ptr, 28 * MB + kid * 65536, 65536)
        e(f"s_lshl_b32 s48, s2, 8\ns_lshl_b32 s49, s38, 6\ns_add_u32 s48, s48, s49\ns_mov_b64 exec, 0xffff\nv_lshlrev_b32 v2, 2, v2\nbuffer_store_dword v{r}, v2, s[84:87], s48 offen")
```

```python
from common import *
ACC = 160; F = [80, 120]; M = 0; AB = 8192; BB = 57344
def acc(j, c): return ACC + (j * 6 + c) * 4

def softmax4(e, P, T, O):
    a = [T + t for t in range(4)]; b = [T + 4 + t for t in range(4)]
    em = [T + 8 + 4 * t for t in range(4)]
    def red(op):
        for t in range(4): e(f"v_permlane32_swap_b32 v{a[t]}, v{b[t]}")
        for t in range(4): e(f"{op} v{a[t]}, v{a[t]}, v{b[t]}")
        for t in range(4): e(f"v_mov_b32 v{b[t]}, v{a[t]}")
        for t in range(4): e(f"v_permlane16_swap_b32 v{a[t]}, v{b[t]}")
        for t in range(4): e(f"{op} v{a[t]}, v{a[t]}, v{b[t]}")
        for t in range(4): e(f"v_mov_b32 v{b[t]}, v{a[t]}")
        for t in range(4): e(f"v_permlane32_swap_b32 v{a[t]}, v{b[t]}")
    for t in range(4): e(f"v_max3_f32 v{a[t]}, v{P[t]}, v{P[t]+1}, v{P[t]+2}")
    for t in range(4): e(f"v_max3_f32 v{b[t]}, -v{P[t]}, -v{P[t]+1}, -v{P[t]+2}")
    for t in range(4): e(f"v_max_f32 v{a[t]}, v{a[t]}, v{P[t]+3}")
    for t in range(4): e(f"v_max_f32_e64 v{b[t]}, v{b[t]}, -v{P[t]+3}")
    red("v_max_f32")
    for t in range(4): e(f"v_mul_f32 v{a[t]}, s52, v{a[t]}")
    for t in range(4): e(f"v_mul_f32 v{b[t]}, s52, v{b[t]}")
    for t in range(4):
        for i in range(4): e(f"v_fma_f32 v{em[t]+i}, v{P[t]+i}, s52, v{b[t]}")
    for t in range(4):
        for i in range(4): e(f"v_fma_f32 v{P[t]+i}, v{P[t]+i}, s51, v{a[t]}")
    for t in range(4):
        for i in range(4): e(f"v_exp_f32 v{em[t]+i}, v{em[t]+i}")
    for t in range(4):
        for i in range(4): e(f"v_exp_f32 v{P[t]+i}, v{P[t]+i}")
    for t in range(4): e(f"v_add_f32 v{b[t]}, v{em[t]}, v{em[t]+1}")
    for t in range(4): e(f"v_add_f32 v{a[t]}, v{P[t]}, v{P[t]+1}")
    for t in range(4): e(f"v_add_f32 v{b[t]}, v{b[t]}, v{em[t]+2}")
    for t in range(4): e(f"v_add_f32 v{a[t]}, v{a[t]}, v{P[t]+2}")
    for t in range(4): e(f"v_add_f32 v{b[t]}, v{b[t]}, v{em[t]+3}")
    for t in range(4): e(f"v_add_f32 v{a[t]}, v{a[t]}, v{P[t]+3}")
    e("s_nop 0")
    red("v_add_f32")
    for t in range(4): e(f"v_rcp_f32 v{a[t]}, v{a[t]}")
    for t in range(4): e(f"v_rcp_f32 v{b[t]}, v{b[t]}")
    for t in range(4):
        for i in range(4): e(f"v_mul_f32 v{P[t]+i}, v{P[t]+i}, v{a[t]}")
    for t in range(4):
        for i in range(4): e(f"v_mul_f32 v{em[t]+i}, v{em[t]+i}, v{b[t]}")
    for t in range(4):
        e(f"v_cvt_pk_bf16_f32 v{O[t]}, v{P[t]}, v{P[t]+1}")
        e(f"v_cvt_pk_bf16_f32 v{O[t]+1}, v{P[t]+2}, v{P[t]+3}")
        e(f"v_cvt_pk_bf16_f32 v{O[t]+2}, v{em[t]}, v{em[t]+1}")
        e(f"v_cvt_pk_bf16_f32 v{O[t]+3}, v{em[t]+2}, v{em[t]+3}")

def gelu(e, regs, tmp):
    n = len(regs)
    for i in range(n): e(f"v_mul_f32 v{tmp+i}, v{regs[i]}, v{regs[i]}")
    for i in range(n): e(f"v_fma_f32 v{tmp+i}, v{tmp+i}, s54, v79")
    for i in range(n): e(f"v_mul_f32 v{tmp+i}, v{tmp+i}, v{regs[i]}")
    for i in range(n): e(f"v_exp_f32 v{tmp+i}, v{tmp+i}")
    for i in range(n): e(f"v_add_f32 v{tmp+i}, 1.0, v{tmp+i}")
    for i in range(n): e(f"v_rcp_f32 v{tmp+i}, v{tmp+i}")
    for i in range(n): e(f"v_mul_f32 v{regs[i]}, v{regs[i]}, v{tmp+i}")

def pref(e):
    if 'A' not in X: return
    srd(e, 76, 70, 0, 2048 * 4096)
    e("v_lshlrev_b32 v31, 4, v0\ns_lshl_b32 s68, s2, 15")
    for i in range(8): e(f"buffer_load_dwordx4 a[28:31], v31, s[76:79], s68 offen\ns_add_u32 s68, s68, 4096")
    e("s_lshl_b32 s68, s2, 12")
    srd(e, 76, 72, 0, 512 * 1024); e("buffer_load_dwordx4 a[28:31], v31, s[76:79], s68 offen")
    srd(e, 80, 74, 0, 688 * 1024); e("buffer_load_dwordx4 a[28:31], v31, s[80:83], s68 offen")

def variant(e, kind):
    qkv = kind == "qkv"
    stride = 3072 if qkv else 2752
    S1 = 512 if qkv else 64
    T = [True, True, False] * 2 if qkv else ([True] * 6 if kind == "z1" else [False] * 6)
    e.label(f"P1_{kind}")
    if qkv:
        srd(e, 20, 6, 0, 512 * 3072); e("s_lshl_b32 s44, s37, 6")
        srd(e, 28, 12, WS_PHIQ, 2048 * 2048); srd(e, 32, 12, WS_KVP, 32 * 16 * 544 * 4)
    else:
        srd(e, 20, 10, 0, 512 * 2752)
        e(f"s_and_b32 s53, s37, 3\ns_mul_i32 s44, s53, 176")
        if kind == "z2":
            e("s_add_u32 s44, s44, 688")
            srd(e, 28, 12, WS_Z2T, 43 * 65536); srd(e, 32, 12, WS_STATS, 4 * 2048 * 8)
        else:
            srd(e, 28, 12, WS_Z1, 128 * 44 * 512)
    e("s_mul_i32 s48, s38, 384\ns_movk_i32 s49, 2731")
    for jj in range(6):
        e(f"""v_add_u32 v40, s48, v1
        v_add_u32 v40, {64*jj}, v40
        v_mul_lo_u32 v41, v40, s49
        v_lshrrev_b32 v41, 16, v41
        v_mul_u32_u24 v42, 24, v41
        v_sub_u32 v42, v40, v42
        v_bfe_u32 v43, v41, 1, 1
        v_bfe_u32 v44, v41, 3, 1
        v_lshl_or_b32 v43, v44, 1, v43
        v_lshrrev_b32 v44, 1, v42
        v_xor_b32 v44, v44, v43
        v_and_b32 v42, 1, v42
        v_lshrrev_b32 v45, 2, v44
        v_and_b32 v46, 3, v44
        v_lshlrev_b32 v46, 4, v46
        v_mul_u32_u24 v45, {S1}, v45
        v_add3_u32 v45, v45, v46, s44
        v_lshlrev_b32 v45, 1, v45
        v_lshl_add_u32 v45, v42, 4, v45
        v_mul_u32_u24 v41, {stride}, v41
        v_add_u32 v{8+jj}, v41, v45""")
    def dma(st, noa=False):
        L = []
        sl = st % 3
        L.append(f"s_movk_i32 s46, {st*128}")
        L.append(f"s_mov_b32 s47, {st*64*stride}")
        for jj in range(0 if noa else 4):
            L.append(f"s_add_u32 m0, s55, {AB + sl*16384 + jj*1024}")
            L.append(f"s_nop 0\nbuffer_load_dwordx4 v{4+jj}, s[16:19], s46 offen lds")
        for jj in range(6):
            L.append(f"s_add_u32 m0, s56, {BB + sl*24576 + jj*1024}")
            L.append(f"s_nop 0\nbuffer_load_dwordx4 v{8+jj}, s[20:23], s47 offen lds")
        return L
    def reads(st, ks, f):
        sl = st % 3; L = []
        for j in range(4):
            L.append(f"ds_read_b128 {vr(F[f]+4*j,4)}, v{14+(j>>1)*2+ks} offset:{sl*16384+(j&1)*2048}")
        for c in range(6):
            for hh in range(2):
                L.append(f"ds_read_b64_tr_b16 {vr(F[f]+16+4*c+2*hh,2)}, v{18+c} offset:{sl*24576+ks*12288+hh*1536}")
        return L
    def mfmas(f, first):
        L = []
        for c in range(6):
            for j in range(4):
                a = vr(F[f] + 4 * j, 4); b = vr(F[f] + 16 + 4 * c, 4); d = vr(acc(j, c), 4)
                x, y = (b, a) if T[c] else (a, b)
                L.append(f"v_mfma_f32_16x16x32_bf16 {d}, {x}, {y}, {'0' if first else d}")
        return L
    def stats(f, first=False):
        L = []
        def m(d, x, y): L.append(f"v_mfma_f32_16x16x32_bf16 {ar(d,4)}, {x}, {y}, {'0' if first else ar(d,4)}")
        for j in range(2):
            r = vr(F[f] + 4 * j, 4)
            m(4 * j, "v[24:27]", r); m(8 + 4 * j, r, r)
        for c in range(3): m(16 + 4 * c, "v[24:27]", vr(F[f] + 16 + 4 * c, 4))
        return L
    TM(e, 1, 31)
    for st in range(3):
        for l in dma(st, True): e(l)
    TM(e, 2, 31)
    e("s_waitcnt vmcnt(12) lgkmcnt(0)\ns_barrier")
    TM(e, 3, 31)
    for l in reads(0, 0, 0): e(l)
    for it in range(8):
        if it == 4: TM(e, 4, 31)
        e("s_waitcnt lgkmcnt(0)")
        interleave(e, mfmas(0, it == 0) + stats(0, it == 0), reads(it, 1, 1), 1)
        if it < 7:
            e(f"s_waitcnt vmcnt({6 if it == 0 else 10 if it < 6 else 0}) lgkmcnt(0)\ns_barrier")
            fill = reads(it + 1, 0, 0) + (dma(it + 3) if it + 3 < 8 else [])
        else:
            e("s_waitcnt lgkmcnt(0)"); fill = []
        interleave(e, stats(1) + mfmas(1, False), fill, 2)
    TM(e, 5, 31)
    e(f"""s_lshl_b32 s48, s39, 8
    s_lshl_b32 s49, s40, 7
    s_add_u32 s48, s48, s49
    v_lshl_add_u32 v40, v2, 2, s48
    s_lshl_b32 s48, s40, 7
    s_lshl_b32 s49, s39, 6
    s_add_u32 s59, s48, s49
    s_xor_b32 s60, s59, 64
    v_lshl_add_u32 v41, v2, 2, s59
    s_mov_b64 exec, 0xffff
    ds_write_b32 v40, a0 offset:{M}
    ds_write_b32 v40, a4 offset:{M+64}
    ds_write_b32 v41, a16 offset:{M+1024}
    ds_write_b32 v41, a20 offset:{M+1024+256}
    ds_write_b32 v41, a24 offset:{M+1024+512}""")
    for i in range(4):
        e(f"s_mov_b32 exec_lo, {0x00100001<<i}\ns_mov_b32 exec_hi, {0x10000100<<i}\nds_write_b32 v40, a{8+i} offset:{M+512}\nds_write_b32 v40, a{12+i} offset:{M+512+64}")
    e(f"""s_mov_b64 exec, -1
    s_waitcnt lgkmcnt(0)
    s_barrier
    v_and_b32 v40, 127, v0
    v_lshlrev_b32 v40, 2, v40
    ds_read_b32 v41, v40 offset:{M}
    ds_read_b32 v42, v40 offset:{M+512}
    s_waitcnt lgkmcnt(0)
    v_mul_f32 v41, {f2u(1/512)}, v41
    v_mul_f32 v42, {f2u(1/512)}, v42
    v_fma_f32 v42, -v41, v41, v42
    v_max_f32 v42, 0, v42
    v_add_f32 v42, {f2u(1e-5)}, v42
    v_rsq_f32 v42, v42
    s_nop 0
    v_mul_f32 v41, v41, v42
    ds_write_b32 v40, v42 offset:{M+2048}
    ds_write_b32 v40, v41 offset:{M+2560}
    s_waitcnt lgkmcnt(0)
    s_barrier""")
    TM(e, 6, 31)
    e(f"""s_lshl_b32 s48, s39, 8
    s_lshl_b32 s49, s40, 7
    s_add_u32 s57, s48, s49
    s_xor_b32 s58, s57, 128
    v_lshl_add_u32 v40, v2, 2, s57
    v_lshl_add_u32 v41, v2, 2, s58
    v_lshl_add_u32 v42, v3, 4, s57
    v_lshl_add_u32 v43, v3, 4, s58
    v_lshl_add_u32 v44, v3, 4, s59
    v_lshl_add_u32 v45, v3, 4, s60
    v_lshl_add_u32 v46, v2, 2, s59
    v_lshl_add_u32 v47, v2, 2, s60""")
    PT = lambda j: 80 + 2 * j
    RN = lambda j: 88 + 4 * j
    RMN = lambda j: 104 + 4 * j
    CS = lambda c: 120 + 4 * c
    for j in range(4):
        if any(T):
            e(f"ds_read_b32 v{PT(j)}, v{40+(j>>1)} offset:{M+2048+(j&1)*64}")
            e(f"ds_read_b32 v{PT(j)+1}, v{40+(j>>1)} offset:{M+2560+(j&1)*64}")
        if not all(T):
            e(f"ds_read_b128 {vr(RN(j),4)}, v{42+(j>>1)} offset:{M+2048+(j&1)*64}")
            e(f"ds_read_b128 {vr(RMN(j),4)}, v{42+(j>>1)} offset:{M+2560+(j&1)*64}")
    for c in range(6):
        if T[c]: e(f"ds_read_b128 {vr(CS(c),4)}, v{44+c//3} offset:{M+1024+(c%3)*256}")
        else: e(f"ds_read_b32 v{CS(c)}, v{46+c//3} offset:{M+1024+(c%3)*256}")
    e("s_waitcnt lgkmcnt(0)")
    for c in range(6):
        for h in range(2):
            for j in range(4):
                t = vr(144 + 4 * j + 2 * h, 2)
                if T[c]: e(f"v_pk_mul_f32 {t}, {vr(CS(c)+2*h,2)}, {vr(PT(j),2)} op_sel:[0,1] op_sel_hi:[1,1]")
                else: e(f"v_pk_mul_f32 {t}, {vr(RMN(j)+2*h,2)}, {vr(CS(c),2)} op_sel_hi:[1,0]")
            for j in range(4):
                t = vr(144 + 4 * j + 2 * h, 2); d = vr(acc(j, c) + 2 * h, 2)
                if T[c]: e(f"v_pk_fma_f32 {d}, {d}, {vr(PT(j),2)}, {t} op_sel_hi:[1,0,1] neg_lo:[0,0,1] neg_hi:[0,0,1]")
                else: e(f"v_pk_fma_f32 {d}, {d}, {vr(RN(j)+2*h,2)}, {t} neg_lo:[0,0,1] neg_hi:[0,0,1]")
    TM(e, 7, 31)
    e("""s_lshl_b32 s48, s36, 7
    s_lshr_b32 s61, s57, 2
    s_lshr_b32 s62, s58, 2
    s_add_u32 s61, s61, s48
    s_add_u32 s62, s62, s48""")
    if qkv:
        for p in range(2):
            e(f"s_lshl_b32 s48, s{61+p}, 11\nv_lshl_add_u32 v{48+p}, v1, 4, s48")
        e("s_waitcnt vmcnt(0)"); pref(e)
        for i in range(4): e(f"v_lshl_or_b32 v{32+i}, v{68+i}, 16, v{32+i}")
        for hs in range(2):
            e(f"s_xor_b32 s48, s39, {hs}\ns_lshl_b32 s49, s40, 1\ns_add_u32 s48, s48, s49\ns_lshl_b32 s49, s37, 2\ns_add_u32 s63, s48, s49\ns_lshl_b32 s64, s63, 10\ns_add_u32 s65, s64, 32768")
            W = vr(32 + 2 * hs, 2)
            TM(e, 8 + hs, 31)
            KV = 52
            for qk in range(2):
                c = 3 * hs + qk
                for j in range(4):
                    e(f"v_cvt_pk_bf16_f32 v{80+2*j}, v{acc(j,c)}, v{acc(j,c)+1}\nv_cvt_pk_bf16_f32 v{81+2*j}, v{acc(j,c)+2}, v{acc(j,c)+3}")
                e("s_nop 1")
                for j in range(4):
                    e(f"v_mfma_f32_16x16x16_bf16 {vr(88+4*j,4)}, {W}, {vr(80+2*j,2)}, 0")
                e("s_nop 7")
                O = [acc(j, c) for j in range(4)]
                softmax4(e, [88 + 4 * j for j in range(4)], 104, O)
                if qk == 0:
                    for j in range(4):
                        e(f"buffer_store_dwordx4 {vr(O[j],4)}, v{48+(j>>1)}, s[28:31], s{64+(j&1)} offen")
                else:
                    e("s_nop 1")
                    for j in range(4):
                        e(f"v_mfma_f32_16x16x16_bf16 {vr(80+8*j,4)}, {vr(O[j],2)}, v[36:37], 0")
                        e(f"v_mfma_f32_16x16x16_bf16 {vr(84+8*j,4)}, {vr(O[j]+2,2)}, v[36:37], 0")
                    cv = 3 * hs + 2
                    for j in range(4):
                        e(f"v_cvt_pk_bf16_f32 v{112+2*j}, v{acc(j,cv)}, v{acc(j,cv)+1}\nv_cvt_pk_bf16_f32 v{113+2*j}, v{acc(j,cv)+2}, v{acc(j,cv)+3}")
                    for j in range(4):
                        for s in range(2):
                            b = 80 + 8 * j + 4 * s
                            e(f"v_cvt_pk_bf16_f32 v{O[j]+2*s}, v{b}, v{b+1}\nv_cvt_pk_bf16_f32 v{O[j]+2*s+1}, v{b+2}, v{b+3}")
                    e("s_nop 1")
                    for j in range(4):
                        for s in range(2):
                            d = vr(KV + 4 * s, 4); dz = vr(KV + 8 + 4 * s, 4)
                            e(f"v_mfma_f32_16x16x16_bf16 {d}, {vr(O[j]+2*s,2)}, {vr(112+2*j,2)}, {'0' if j==0 else d}")
                            e(f"v_mfma_f32_16x16x16_bf16 {dz}, {vr(O[j]+2*s,2)}, v[38:39], {'0' if j==0 else dz}")
                    e("s_nop 7")
                    e(f"""s_and_b32 s48, s63, 3
                    s_lshl_b32 s48, s48, 13
                    s_lshl_b32 s49, s39, 12
                    s_add_u32 s48, s48, s49
                    v_lshl_add_u32 v50, v1, 4, s48""")
                    for q in range(4): e(f"ds_write_b128 v50, {vr(KV+4*q,4)} offset:{AB+q*1024}")
        TM(e, 10, 31)
        e(f"""s_waitcnt lgkmcnt(0)
        s_barrier
        s_lshl_b32 s48, s38, 13
        v_lshl_add_u32 v50, v1, 4, s48""")
        for q in range(8): e(f"ds_read_b128 {vr(80+4*q,4)}, v50 offset:{AB+q*1024}")
        e(f"""s_lshl_b32 s48, s37, 2
        s_add_u32 s48, s48, s38
        s_lshl_b32 s48, s48, 4
        s_add_u32 s48, s48, s36
        s_mul_i32 s48, s48, 2176
        v_lshlrev_b32 v51, 2, v2
        v_lshl_add_u32 v51, v3, 8, v51
        v_lshlrev_b32 v52, 4, v3
        s_waitcnt lgkmcnt(0)""")
        for i in range(16): e(f"v_add_f32 v{80+i}, v{80+i}, v{96+i}")
        for s in range(2):
            for i in range(4): e(f"buffer_store_dword v{80+4*s+i}, v51, s[32:35], s48 offen offset:{s*1024+i*64}")
        e("v_cmp_eq_u32 vcc, 0, v2\ns_and_saveexec_b64 s[66:67], vcc")
        for s in range(2): e(f"buffer_store_dwordx4 {vr(88+4*s,4)}, v52, s[32:35], s48 offen offset:{2048+s*64}")
        TEND(e, 31, 0, 12); e("s_endpgm")
        return
    pref(e)
    e(f"v_mov_b32 v79, {f2u(-2*0.7978845608028654*LOG2E)}\ns_cmp_eq_u32 s53, 3\ns_cselect_b32 s63, 10, 11")
    if kind == "z1":
        for p in range(2):
            e(f"s_mul_i32 s48, s{61+p}, 1408\nv_lshl_add_u32 v{48+p}, v1, 3, s48")
    else:
        for p in range(2):
            e(f"s_lshl_b32 s48, s{61+p}, 5\nv_lshl_add_u32 v{48+p}, v1, 4, s48")
        for i in range(32): e(f"v_mov_b32 v{112+i}, 0")
    for c in range(6):
        e(f"s_lshr_b32 s48, s{59+c//3}, 6\ns_add_u32 s48, s48, {(c%3)*4}\ns_cmp_ge_u32 s48, s63\ns_cbranch_scc1 P1_{kind}_skip{c}")
        e(f"s_mul_i32 s49, s53, 11\ns_add_u32 s48, s48, s49")
        regs = [acc(j, c) + i for j in range(4) for i in range(4)]
        gelu(e, regs, 80)
        for j in range(4):
            e(f"v_cvt_pk_bf16_f32 v{96+2*j}, v{acc(j,c)}, v{acc(j,c)+1}\nv_cvt_pk_bf16_f32 v{97+2*j}, v{acc(j,c)+2}, v{acc(j,c)+3}")
        if kind == "z1":
            e(f"s_lshl_b32 s64, s48, 9\ns_add_u32 s65, s64, {44*512}")
            for j in range(4): e(f"buffer_store_dwordx2 {vr(96+2*j,2)}, v{48+(j>>1)}, s[28:31], s{64+(j&1)} offen")
        else:
            e(f"s_lshl_b32 s64, s48, 16")
            for p in range(2): e(f"buffer_store_dwordx4 {vr(96+4*p,4)}, v{48+p}, s[28:31], s64 offen")
            for j in range(4):
                for h in range(2):
                    e(f"v_lshlrev_b32 v{80+4*j+2*h}, 16, v{96+2*j+h}\nv_and_b32 v{81+4*j+2*h}, 0xffff0000, v{96+2*j+h}")
            for k in range(8):
                e(f"v_pk_add_f32 {vr(112+2*k,2)}, {vr(112+2*k,2)}, {vr(80+2*k,2)}")
                e(f"v_pk_fma_f32 {vr(128+2*k,2)}, {vr(80+2*k,2)}, {vr(80+2*k,2)}, {vr(128+2*k,2)}")
        e.label(f"P1_{kind}_skip{c}")
    TM(e, 10, 31)
    if kind == "z2":
        e("s_nop 1")
        for sh in (8, 4, 2, 1):
            for i in range(32): e(f"v_add_f32_dpp v{112+i}, v{112+i}, v{112+i} row_ror:{sh} row_mask:0xf bank_mask:0xf")
        e("v_cmp_eq_u32 vcc, 0, v2\ns_and_saveexec_b64 s[66:67], vcc")
        for j in range(4):
            for i in range(4):
                e(f"ds_add_f32 v{42+(j>>1)}, v{112+4*j+i} offset:{M+3072+(j&1)*64+4*i}")
                e(f"ds_add_f32 v{42+(j>>1)}, v{128+4*j+i} offset:{M+3584+(j&1)*64+4*i}")
        e(f"""s_mov_b64 exec, s[66:67]
        s_waitcnt lgkmcnt(0)
        s_barrier
        v_and_b32 v40, 127, v0
        v_lshlrev_b32 v41, 2, v40
        ds_read_b32 v42, v41 offset:{M+3072}
        ds_read_b32 v43, v41 offset:{M+3584}
        s_lshl_b32 s48, s53, 11
        s_lshl_b32 s49, s36, 7
        s_add_u32 s48, s48, s49
        s_lshl_b32 s48, s48, 3
        v_lshlrev_b32 v41, 3, v40
        s_waitcnt lgkmcnt(0)
        buffer_store_dwordx2 v[42:43], v41, s[32:35], s48 offen""")
    TEND(e, 31, 0, 12); e("s_endpgm")

def gen(e):
    kernel_begin(e, "p1_kernel")
    e(f"""s_cmp_ge_u32 s2, 256
    s_cbranch_scc1 P1_exit
    s_load_dwordx4 s[4:7], s[0:1], 0
    s_load_dwordx2 s[8:9], s[0:1], 16
    s_load_dwordx2 s[10:11], s[0:1], 40
    s_load_dwordx2 s[12:13], s[0:1], 88
    s_load_dwordx2 s[70:71], s[0:1], 48
    s_load_dwordx2 s[72:73], s[0:1], 24
    s_load_dwordx2 s[74:75], s[0:1], 64
    v_lshrrev_b32 v40, 6, v0
    v_and_b32 v1, 63, v0
    v_readfirstlane_b32 s38, v40
    v_and_b32 v2, 15, v0
    v_bfe_u32 v3, v0, 4, 2
    s_and_b32 s48, s2, 1
    s_lshl_b32 s48, s48, 3
    s_bfe_u32 s37, s2, 0x30003
    s_add_u32 s37, s37, s48
    s_bfe_u32 s48, s2, 0x20001
    s_lshl_b32 s48, s48, 2
    s_lshr_b32 s36, s2, 6
    s_add_u32 s36, s36, s48
    s_lshr_b32 s39, s38, 1
    s_and_b32 s40, s38, 1
    s_mov_b32 s50, 0x3f803f80
    s_mov_b32 s51, {f2u(LOG2E)}
    s_mov_b32 s52, {f2u(-LOG2E)}
    s_mov_b32 s54, {f2u(-2*0.7978845608028654*LOG2E*0.044715)}
    s_lshl_b32 s55, s38, 12
    s_mul_i32 s56, s38, 6144
    v_mov_b32 v40, 0
    v_mov_b32 v41, 0
    v_mov_b32 v42, 0
    v_mov_b32 v43, 0
    v_lshlrev_b32 v44, 4, v0
    ds_write_b128 v44, v[40:43] offset:{M}""")
    TM(e, 0, 31)
    if 'B' in X:
        e("s_getpc_b64 s[80:81]"); e.label("P1_pc")
        e(f"s_mov_b32 s82, code_end-P1_pc\ns_mov_b32 s83, 0x00020000\ns_lshr_b32 s48, s2, 3\ns_lshl_b32 s48, s48, 12\nbuffer_load_dwordx4 a[28:31], v44, s[80:83], s48 offen")
    for i in range(24, 28): e(f"v_mov_b32 v{i}, s50")
    e(f"""s_lshl_b32 s48, s36, 7
    s_lshl_b32 s49, s38, 5
    s_add_u32 s48, s48, s49
    v_lshrrev_b32 v40, 3, v1
    v_and_b32 v41, 7, v1
    v_xor_b32 v41, v41, v40
    v_add_u32 v40, s48, v40
    v_lshlrev_b32 v40, 10, v40
    v_lshl_add_u32 v4, v41, 4, v40
    v_add_u32 v5, 8192, v4
    v_add_u32 v6, 16384, v4
    v_add_u32 v7, 24576, v4
    s_waitcnt lgkmcnt(0)""")
    srd(e, 16, 4, 0, 2048 * 1024)
    for st in range(3):
        e(f"s_movk_i32 s46, {st*128}")
        for jj in range(4): e(f"s_add_u32 m0, s55, {AB + st*16384 + jj*1024}\ns_nop 0\nbuffer_load_dwordx4 v{4+jj}, s[16:19], s46 offen lds")
    e(f"""    v_and_b32 v40, 7, v2
    v_xor_b32 v40, v40, v3
    v_lshlrev_b32 v40, 4, v40
    v_lshl_add_u32 v40, v2, 7, v40
    s_lshl_b32 s48, s39, 13
    s_lshl_b32 s49, s40, 12
    s_add_u32 s48, s48, s49
    s_add_u32 s48, s48, {AB}
    v_add_u32 v14, s48, v40
    v_xor_b32 v15, 64, v14
    v_xor_b32 v16, 4096, v14
    v_xor_b32 v17, 4096, v15
    v_lshrrev_b32 v40, 2, v2
    v_lshl_add_u32 v40, v3, 3, v40
    v_mul_u32_u24 v40, 384, v40
    v_and_b32 v41, 3, v2
    v_lshl_add_u32 v40, v41, 3, v40
    v_add_u32 v40, {BB}, v40
    v_lshrrev_b32 v41, 3, v2
    v_and_b32 v42, 1, v3
    v_lshl_or_b32 v41, v42, 1, v41
    s_lshl_b32 s48, s40, 1""")
    for c in range(6):
        e(f"s_xor_b32 s57, s39, {c//3}\ns_add_u32 s57, s57, {(c%3)*4}\ns_add_u32 s57, s57, s48\nv_xor_b32 v42, s57, v41\nv_lshl_add_u32 v{18+c}, v42, 5, v40")
    e(f"""v_lshlrev_b32 v40, 2, v3
    v_sub_u32 v40, v2, v40
    v_mov_b32 v41, 0x3f80
    v_mov_b32 v42, 0x3f800000
    v_mov_b32 v38, s50
    v_mov_b32 v39, s50""")
    for r, (a, b) in ((36, (0, 1)), (37, (2, 3))):
        e(f"v_cmp_eq_u32 vcc, {a}, v40\nv_cmp_eq_u32 s[66:67], {b}, v40\ns_nop 1\nv_cndmask_b32 v{r}, 0, v41, vcc\nv_cndmask_b32 v{r}, v{r}, v42, s[66:67]")
    e("s_cmp_ge_u32 s37, 12\ns_cbranch_scc1 P1_z2\ns_cmp_ge_u32 s37, 8\ns_cbranch_scc1 P1_z1")
    srd(e, 24, 8, 0, 32 * 512)
    e("v_lshlrev_b32 v40, 1, v2\nv_lshl_add_u32 v40, v3, 7, v40")
    for hs in range(2):
        e(f"s_xor_b32 s48, s39, {hs}\ns_lshl_b32 s49, s40, 1\ns_add_u32 s48, s48, s49\ns_lshl_b32 s49, s37, 2\ns_add_u32 s48, s48, s49\ns_lshl_b32 s48, s48, 9")
        for h in range(2):
            e(f"buffer_load_ushort v{32+2*hs+h}, v40, s[24:27], s48 offen offset:{64*h}")
            e(f"buffer_load_ushort v{68+2*hs+h}, v40, s[24:27], s48 offen offset:{64*h+32}")
    variant(e, "qkv"); variant(e, "z1"); variant(e, "z2")
    e.label("P1_exit"); e("s_endpgm")
```

```python
from common import *

def head(e, name):
    kernel_begin(e, name)
    e(f"""s_cmp_ge_u32 s2, 256
    s_cbranch_scc1 {name}_exit
    s_load_dwordx2 s[4:5], s[0:1], 0
    s_load_dwordx2 s[6:7], s[0:1], 24
    s_load_dwordx4 s[8:11], s[0:1], 48
    s_load_dwordx4 s[12:15], s[0:1], 64
    s_load_dwordx2 s[16:17], s[0:1], 88
    v_lshrrev_b32 v4, 6, v0
    v_and_b32 v1, 63, v0
    v_readfirstlane_b32 s38, v4
    v_and_b32 v2, 15, v0
    v_bfe_u32 v3, v0, 4, 2
    s_and_b32 s48, s2, 7
    s_lshl_b32 s48, s48, 2
    s_lshr_b32 s36, s2, 6
    s_add_u32 s36, s36, s48
    s_bfe_u32 s37, s2, 0x30003
    s_waitcnt lgkmcnt(0)""")

def reduce_tiles(e, nb, base, dst):
    nt = 4 * nb
    e(f"s_nop 7\ns_mul_i32 s48, s38, {nt*1024}\ns_add_u32 s48, s48, {base}\nv_lshl_add_u32 v10, v1, 4, s48")
    for t in range(nt): e(f"ds_write_b128 v10, {ar(4*t,4)} offset:{t*1024}")
    e(f"s_mul_i32 s48, s38, {nb*1024}\ns_add_u32 s48, s48, {base}\nv_lshl_add_u32 v10, v1, 4, s48\nv_add_u32 v11, {2*nt*1024}, v10\ns_waitcnt lgkmcnt(0)\ns_barrier")
    for w in range(4):
        for c in range(nb):
            e(f"ds_read_b128 {vr(dst+w*4*nb+4*c,4)}, v{10+(w>>1)} offset:{(w&1)*nt*1024+c*1024}")
    e("s_waitcnt lgkmcnt(0)")
    n = 4 * nb
    for i in range(0, n, 2):
        e(f"v_pk_add_f32 {vr(dst+i,2)}, {vr(dst+i,2)}, {vr(dst+n+i,2)}")
        e(f"v_pk_add_f32 {vr(dst+2*n+i,2)}, {vr(dst+2*n+i,2)}, {vr(dst+3*n+i,2)}")
    for i in range(0, n, 2):
        e(f"v_pk_add_f32 {vr(dst+i,2)}, {vr(dst+i,2)}, {vr(dst+2*n+i,2)}")


def merge(N, V):
    out = []; k = 0
    for q, n in enumerate(N):
        while k < len(V) and k * len(N) <= q * len(V): out.append(V[k]); k += 1
        out.append(n)
    return out + V[k:]

class VM:
    def __init__(self): self.n = 0; self.t = {}
    def op(self, tag=None, k=1):
        self.n += k
        if tag is not None: self.t[tag] = self.n
    def w(self, *tags):
        c = min(63, min(self.n - self.t[t] for t in tags))
        return c

KVL = 114688
AOT = 38 * 1024

def gen_p2(e):
    head(e, "p2_kernel"); TM(e, 0, 253)
    vm = VM()
    srd(e, 20, 8, 0, 2048 * 4096); srd(e, 24, 16, WS_Z2T, 43 * 65536); srd(e, 28, 16, WS_STATS, 65536)
    ST = 96; NST = 4; SB = [16, 24]; AF = [48, 64, 80]; MF = [112, 116]; CA = 120
    e(f"""s_mul_i32 s39, s37, 11
    s_lshr_b32 s39, s39, 1
    s_lshl_b32 s48, s38, 12
    v_lshl_add_u32 v4, v1, 4, s48""")
    for gq in range(4):
        e(f"s_movk_i32 s48, {gq*16384}" if gq < 2 else f"s_mov_b32 s48, {gq*16384}")
        for q in range(4): e(f"buffer_load_dwordx4 {vr(16+16*gq+4*q,4)}, v4, s[28:31], s48 offen offset:{1024*q}")
    vm.op("st", 16)
    e(f"""s_lshl_b32 s48, s39, 16
    s_lshl_b32 s49, s38, 14
    s_add_u32 s48, s48, s49
    v_lshl_add_u32 v7, v1, 4, s48
    s_lshl_b32 s48, s36, 18
    s_lshl_b32 s49, s38, 10
    s_add_u32 s48, s48, s49
    v_and_b32 v5, 7, v1
    v_xor_b32 v5, v5, v3
    v_lshl_add_u32 v5, v5, 4, s48
    v_lshrrev_b32 v6, 3, v1
    v_lshl_add_u32 v6, v6, 12, v5
    v_xor_b32 v5, 64, v6
    s_mul_i32 s55, s38, 24576
    s_add_u32 s55, s55, 16384
    s_mov_b32 s56, 0xffff0000""")
    for i in range(6): e(f"s_mov_b32 s{70+i}, {i*65536}")
    e("s_lshl_b32 s48, s38, 16")
    for i in range(8): e(f"s_xor_b32 s{60+i}, s48, {i*32768}")
    def loads(i):
        b = ST + 24 * (i % NST); L = []
        if i % 4 == 0 and i: L.append("v_add_u32 v7, 0x1000, v7")
        for c in range(6): L.append(f"buffer_load_dwordx4 {vr(b+4*c,4)}, v7, s[24:27], s{70+c} offen offset:{1024*(i%4)}")
        vm.op(("B", i), 6)
        return L
    def dma(n):
        L = []
        for jj in range(8):
            L.append(f"s_add_u32 m0, s55, {(n%3)*8192+jj*1024}\ns_nop 0\nbuffer_load_dwordx4 v{6-(jj&1)}, s[20:23], s{60+jj} offen lds")
        L.append("v_add_u32 v6, 128, v6\nv_add_u32 v5, 128, v5")
        vm.op(("D", n), 8)
        return L
    KZ = list(range(208, 216)) + list(range(232, 240))
    def side(i):
        L = []
        if i == 14:
            L.append(f"""s_lshl_b32 s92, s36, 2
            s_add_u32 s92, s92, s38
            s_mul_i32 s48, s92, 22528
            s_lshl_b32 s49, s39, 9
            s_add_u32 s48, s48, s49
            v_lshl_add_u32 v229, v1, 3, s48
            s_lshl_b32 s48, s92, 5
            v_lshl_add_u32 v230, v2, 1, s48
            buffer_load_ushort v252, v230, s[44:47], 0 offen
            s_mul_i32 s48, s92, {AOT}
            v_lshl_add_u32 v226, v1, 4, s48""")
            for c in range(6): L.append(f"buffer_load_dwordx2 {vr(240+2*c,2)}, v229, s[40:43], 0 offen offset:{512*c}")
            vm.op("z1", 7)
        if i == 12:
            L.append(f"s_lshr_b32 s57, s2, 3\ns_mul_i32 s58, s57, {16*2176}\nv_lshlrev_b32 v224, 3, v0\nv_lshrrev_b32 v225, 4, v0\nv_mul_u32_u24 v225, 2176, v225\nv_lshl_add_u32 v225, v2, 3, v225")
            L.append("buffer_load_dwordx2 v[254:255], v225, s[76:79], s58 offen offset:2048")
            for p in range(8): L.append(f"buffer_load_dwordx2 {vr(192+2*p,2)}, v224, s[76:79], s58 offen\ns_add_u32 s58, s58, 2176")
            vm.op("kv", 9)
        if i == 13:
            for p in range(8, 16): L.append(f"buffer_load_dwordx2 {vr(192+2*p,2)}, v224, s[76:79], s58 offen\ns_add_u32 s58, s58, 2176")
            vm.op("kv", 8)
        if i == 15:
            L.append(f"""s_and_b32 s48, s2, 7
            s_lshl_b32 s48, s48, 4
            s_lshl_b32 s49, s38, 2
            s_add_u32 s48, s48, s49
            s_lshl_b32 s49, s48, 15
            v_lshl_add_u32 v227, v1, 4, s49
            s_mul_i32 s48, s48, {AOT}
            v_lshl_add_u32 v228, v1, 4, s48
            s_lshl_b32 s58, s57, 10""")
            for j in range(4): L.append(f"buffer_load_dwordx4 {ar(96+4*j,4)}, v227, s[80:83], s58 offen\ns_add_u32 s58, s58, 32768")
            vm.op("pq", 4)
        if i == 15:
            L.append(f"""s_cmp_ge_u32 s2, 64
            s_cselect_b32 s88, s12, s6
            s_cselect_b32 s89, s13, s7
            s_mov_b32 s90, {512*1024}
            s_cmov_b32 s90, {688*1024}
            s_mov_b32 s91, 0x00020000
            s_cselect_b32 s59, {512*1024}, 0
            s_lshr_b32 s48, s2, 2
            s_and_b32 s49, s2, 3
            s_lshl_b32 s58, s48, 15
            s_lshl_b32 s49, s49, 12
            s_add_u32 s58, s58, s49
            s_sub_u32 s58, s58, s59
            s_add_u32 s59, s58, 16384
            v_lshlrev_b32 v225, 2, v0""")
            for q in range(8): L.append(f"buffer_load_dword v{232+q}, v225, s[88:91], s{58+q//4} offen offset:{(q%4)*1024}")
            vm.op("w", 8)
        return L
    srd(e, 32, 16, WS_AO, 128 * AOT); srd(e, 40, 16, WS_Z1, 2048 * 1408); srd(e, 44, 10, 0, 4096)
    srd(e, 76, 16, WS_KVP, 32 * 16 * 2176); srd(e, 80, 16, WS_PHIQ, 2048 * 2048)
    for l in dma(0) + dma(1) + loads(0): e(l)
    e(f"""s_lshl_b32 s48, s38, 11
    v_lshl_add_u32 v8, v3, 4, s48
    v_lshl_add_u32 v9, v1, 3, s48
    v_lshrrev_b32 v10, 1, v3
    v_lshrrev_b32 v11, 1, v2
    v_xor_b32 v10, v10, v11
    v_lshl_add_u32 v10, v10, 4, s55
    v_lshl_add_u32 v10, v2, 7, v10
    v_and_b32 v11, 1, v3
    v_lshl_add_u32 v12, v11, 3, v10
    v_xor_b32 v13, 32, v12
    v_xor_b32 v14, 64, v12
    v_xor_b32 v15, 0x60, v12
    s_lshl_b32 s48, s38, 10
    v_lshl_add_u32 v10, v3, 6, s48
    v_bfe_u32 v11, v1, 1, 2
    v_lshl_add_u32 v10, v11, 4, v10
    v_bfe_u32 v11, v1, 3, 1
    v_lshl_add_u32 v10, v11, 3, v10
    v_and_b32 v11, 1, v1
    v_lshl_add_u32 v10, v11, 2, v10
    v_lshlrev_b32 v11, 12, v11
    v_lshl_add_u32 v11, v3, 4, v11
    v_add_u32 v11, s48, v11""")
    TM(e, 1, 253)
    e(f"s_waitcnt vmcnt({vm.w('st')})")
    TM(e, 2, 253)
    e0 = e; e = E()
    for k in range(8):
        e(f"v_pk_add_f32 {vr(16+2*k,2)}, {vr(16+2*k,2)}, {vr(32+2*k,2)}\nv_pk_add_f32 {vr(48+2*k,2)}, {vr(48+2*k,2)}, {vr(64+2*k,2)}")
    for k in range(8): e(f"v_pk_add_f32 {vr(16+2*k,2)}, {vr(16+2*k,2)}, {vr(48+2*k,2)}")
    for k in range(16): e(f"v_mul_f32 v{16+k}, {f2u(1/688)}, v{16+k}")
    for k in range(8): e(f"v_fma_f32 v{17+2*k}, -v{16+2*k}, v{16+2*k}, v{17+2*k}")
    for k in range(8): e(f"v_max_f32 v{17+2*k}, 0, v{17+2*k}")
    for k in range(8): e(f"v_add_f32 v{17+2*k}, {f2u(1e-5)}, v{17+2*k}")
    for k in range(8): e(f"v_rsq_f32 v{32+k}, v{17+2*k}")
    for q in range(4): e(f"v_cvt_pk_bf16_f32 v{40+q}, v{16+4*q}, v{18+4*q}")
    for q in range(4): e(f"v_lshlrev_b32 v{48+2*q}, 16, v{40+q}\nv_and_b32 v{49+2*q}, s56, v{40+q}")
    for k in range(8): e(f"v_sub_f32 v{48+k}, v{16+2*k}, v{48+k}")
    for q in range(4): e(f"v_cvt_pk_bf16_f32 v{44+q}, v{48+2*q}, v{49+2*q}")
    for q in range(4): e(f"ds_write_b64 v9, {vr(32+2*q,2)} offset:{512*q}\nds_write_b32 v10, v{40+q} offset:{8192+256*q}\nds_write_b32 v10, v{44+q} offset:{12288+256*q}")
    for l in merge(e.L, loads(1)): e0(l)
    e = e0
    e("s_waitcnt lgkmcnt(0)")
    def sreads(i):
        b = SB[i & 1]
        return [f"ds_read_b128 {vr(b,4)}, v8 offset:{128*i}", f"ds_read_b128 {vr(b+4,4)}, v8 offset:{128*i+64}"]
    def mread(i): return [f"ds_read_b128 {ar(MF[i&1],4)}, v11 offset:{8192+64*i}"]
    def areads(i):
        b = AF[i % 3]; L = []
        for j in range(4):
            for p in range(2): L.append(f"ds_read_b64 {vr(b+4*j+2*p,2)}, v{12+2*(i&1)+p} offset:{((i>>1)%3)*8192+j*2048}")
        return L
    def norm(i):
        b = AF[i % 3]; s = SB[i & 1]; L = []
        for c in range(4):
            t = 32 + 8 * (c & 1)
            for q in range(4):
                L.append(f"v_lshlrev_b32 v{t+2*q}, 16, v{b+4*c+q}")
                L.append(f"v_and_b32 v{t+2*q+1}, s56, v{b+4*c+q}")
            for q in range(8): L.append(f"v_mul_f32 v{t+q}, v{t+q}, v{s+q}")
            for q in range(4): L.append(f"v_cvt_pk_bf16_f32 v{b+4*c+q}, v{t+2*q}, v{t+2*q+1}")
        return L
    def mf(i):
        b = ST + 24 * (i % NST); L = []
        for c in range(7):
            for j in range(4):
                d = ar((j * 6 + c) * 4, 4) if c < 6 else ar(CA + 4 * j, 4)
                L.append(f"v_mfma_f32_16x16x32_bf16 {d}, {vr(b+4*c,4) if c < 6 else ar(MF[i&1],4)}, {vr(AF[i%3]+4*j,4)}, {'0' if i==0 else d}")
        return L
    for l in sreads(0) + sreads(1) + mread(0): e(l)
    e(f"s_waitcnt vmcnt({vm.w(('D',0))})")
    TM(e, 3, 253)
    for l in areads(0) + areads(1): e(l)
    e("s_waitcnt lgkmcnt(8)")
    for l in merge(norm(0), loads(2)): e(l)
    tile = lambda j, c: (j * 6 + c) * 4 if c < 6 else CA + 4 * j
    wr = lambda jl, c: f"ds_write_b128 v10, {ar(tile(jl,c),4)} offset:{(jl-1)*7168+c*1024}"
    def kvsum():
        L = [f"s_waitcnt vmcnt({vm.w('kv')})"]
        for st in (16, 8, 4, 2):
            for p in range(st): L.append(f"v_add_f32 v{192+p}, v{192+p}, v{192+p+st}")
        L.append(f"""v_permlane32_swap_b32 v254, v255
        v_add_u32 v4, {KVL}, v224
        s_lshl_b32 s48, s38, 7
        v_add_f32 v254, v254, v255
        v_lshl_add_u32 v5, v2, 3, s48
        v_mov_b32 v255, v254
        v_lshrrev_b32 v11, 1, v3
        s_nop 1
        v_permlane16_swap_b32 v254, v255
        v_lshl_add_u32 v5, v11, 2, v5
        v_add_u32 v5, {KVL}, v5
        v_add_f32 v254, v254, v255
        ds_write_b64 v4, v[192:193]
        ds_write_b32 v5, v254 offset:2048
""")
        L.append(f"""v_lshlrev_b32 v8, 2, v2
        v_lshl_add_u32 v8, v3, 8, v8
        v_add_u32 v8, {KVL}, v8
        v_lshlrev_b32 v12, 4, v3
        v_add_u32 v12, {KVL}, v12
        v_lshl_add_u32 v10, v1, 4, s55""")
        for jl in range(1, 4): L.append(f"s_xor_b32 s48, s38, {jl}\ns_mul_i32 s48, s48, 24576\ns_add_u32 s48, s48, {16384+(jl-1)*7168}\nv_lshl_add_u32 v{12+jl}, v1, 4, s48")
        return L
    for i in range(16):
        if 'u' in X:
            if i < 15: TM(e, i, 253)
        elif i in (0, 8): TM(e, 4 + i // 8, 253)
        e(f"s_waitcnt vmcnt({vm.w(('B',i),('D',min(7,(i+2)>>1)))}) lgkmcnt(0)")
        if i + 1 < 16:
            fill = mread(i + 1)
            if i + 2 < 16: fill += areads(i + 2) + sreads(i + 2)
            V = (dma(2) if i == 0 else []) + (loads(i + 3) if i + 3 < 16 else [])
            if i % 2 == 1 and (i >> 1) + 3 < 8: V += dma((i >> 1) + 3)
            fill += merge(norm(i + 1), V + side(i))
            if i == 14: fill += kvsum()[-4:]
            interleave(e, mf(i), fill, 4)
        else:
            M = mf(i)
            for jl in (1, 2, 3, 0):
                pj = {1: 0, 2: 1, 3: 2, 0: 3}[jl]
                interleave(e, M[jl::4], [wr(pj, c) for c in range(7)] if pj else side(15), 1 if pj else 2)
        e("s_nop 1")
    if 'u' not in X: TM(e, 6, 253)
    for l in kvsum()[:-4]: e(l)
    for c in range(7):
        for i in range(4): e(f"v_accvgpr_read_b32 v{16+4*c+i}, a{tile(0,c)+i}")
    e("s_waitcnt lgkmcnt(0)\ns_barrier")
    for jl in range(1, 4):
        for c in range(7): e(f"ds_read_b128 {vr(16+28*jl+4*c,4)}, v{12+jl} offset:{c*1024}")
    for s in range(2):
        for i in range(4): e(f"ds_read_b32 v{192+4*s+i}, v8 offset:{1024*s+64*i}")
        for w in range(4): e(f"ds_read_b128 {vr(160+8*w+4*s,4)}, v12 offset:{2048+128*w+64*s}")
    for jl in range(1, 4):
        e(f"s_waitcnt lgkmcnt(15)")
        for i in range(0, 28, 2): e(f"v_pk_add_f32 {vr(16+i,2)}, {vr(16+i,2)}, {vr(16+28*jl+i,2)}")
    if 'u' not in X: TM(e, 7, 253)
    e(f"s_waitcnt vmcnt({vm.w('z1')})\nv_lshlrev_b32 v252, 16, v252\nv_sub_f32 v252, v252, v40\nv_sub_f32 v252, v252, v41\ns_add_u32 s59, s39, 32")
    for c in range(6):
        z = 240 + 2 * c; a = 16 + 4 * c
        for h in range(2):
            e(f"v_lshlrev_b32 v{112+2*h}, 16, v{z+h}\nv_and_b32 v{113+2*h}, s56, v{z+h}")
        for i in range(4): e(f"v_add_f32 v{a+i}, v{a+i}, v252")
        for h in range(2): e(f"v_pk_mul_f32 {vr(a+2*h,2)}, {vr(a+2*h,2)}, {vr(112+2*h,2)}")
        e(f"v_cvt_pk_bf16_f32 v{z}, v{a}, v{a+1}\nv_cvt_pk_bf16_f32 v{z+1}, v{a+2}, v{a+3}")
        e("s_lshr_b32 s48, s59, 1\ns_lshl_b32 s48, s48, 10\ns_and_b32 s49, s59, 1\ns_lshl_b32 s49, s49, 3\ns_add_u32 s48, s48, s49")
        if c == 5:
            e(f"s_cmp_eq_u32 s59, 75\ns_cselect_b64 vcc, 0, -1\nv_cndmask_b32 v{z}, 0, v{z}, vcc\nv_cndmask_b32 v{z+1}, 0, v{z+1}, vcc")
        e(f"buffer_store_dwordx2 {vr(z,2)}, v226, s[32:35], s48 offen\ns_add_u32 s59, s59, 1"); vm.op()
    if 'u' not in X: TM(e, 8, 253)
    e("s_waitcnt lgkmcnt(0)")
    for k in range(16): e(f"v_add_f32 v{160+k}, v{160+k}, v{176+k}")
    for k in range(8): e(f"v_add_f32 v{200+k}, v{160+k}, v{168+k}")
    for k in range(8): e(f"v_cvt_pk_bf16_f32 v{80+k}, v{192+2*k}, v{193+2*k}")
    e(f"s_waitcnt vmcnt({vm.w('pq')})\ns_lshr_b32 s58, s57, 1\ns_lshl_b32 s58, s58, 10\ns_and_b32 s49, s57, 1\ns_lshl_b32 s49, s49, 3\ns_add_u32 s58, s58, s49")
    for j in range(4):
        e(f"v_mfma_f32_16x16x32_bf16 {vr(96+4*j,4)}, v[80:83], {ar(96+4*j,4)}, 0")
        e(f"v_mfma_f32_16x16x32_bf16 {vr(112+4*j,4)}, v[84:87], {ar(96+4*j,4)}, 0")
    e("s_nop 7")
    for i in range(16): e(f"v_add_f32 v{112+i}, {f2u(1e-6)}, v{112+i}")
    for i in range(16): e(f"v_rcp_f32 v{112+i}, v{112+i}")
    for i in range(16): e(f"v_mul_f32 v{96+i}, v{96+i}, v{112+i}")
    for j in range(4):
        e(f"v_cvt_pk_bf16_f32 v{128+2*j}, v{96+4*j}, v{97+4*j}\nv_cvt_pk_bf16_f32 v{129+2*j}, v{98+4*j}, v{99+4*j}")
        e(f"buffer_store_dwordx2 {vr(128+2*j,2)}, v228, s[32:35], s58 offen\ns_add_u32 s58, s58, {AOT}")
    if 'u' not in X: TM(e, 9, 253)
    e("s_cmp_ge_u32 s2, 152\ns_cbranch_scc1 p2_kernel_exit")
    srd(e, 24, 16, WS_WT, 32 * AOT)
    e("s_lshr_b32 s57, s2, 2\ns_and_b32 s49, s2, 3")
    e(f"""s_lshl_b32 s58, s57, 10
    s_lshl_b32 s49, s49, 8
    s_add_u32 s58, s58, s49
    s_mov_b32 s48, 0x05040100
    s_mov_b32 s49, 0x07060302
    v_lshrrev_b32 v5, 3, v0
    v_mul_u32_u24 v5, {AOT}, v5
    v_and_b32 v6, 7, v0
    v_lshl_add_u32 v5, v6, 5, v5
    s_waitcnt vmcnt(10)""")
    for q in range(4):
        e(f"v_perm_b32 v{72+q}, v{233+2*q}, v{232+2*q}, s48\nv_perm_b32 v{76+q}, v{233+2*q}, v{232+2*q}, s49")
    e("buffer_store_dwordx4 v[72:75], v5, s[24:27], s58 offen\nbuffer_store_dwordx4 v[76:79], v5, s[24:27], s58 offen offset:16")
    e.label("p2_kernel_exit"); TEND(e, 253, 1); e("s_endpgm")

def gen_p3(e):
    head(e, "p3_kernel"); TM(e, 0, 24)
    vm = VM()
    srd(e, 20, 16, WS_AO, 128 * AOT); srd(e, 24, 16, WS_WT, 32 * AOT); srd(e, 28, 4, 0, 2048 * 1024); srd(e, 32, 14, 0, 2048 * 1024)
    ST = 32; NST = 7
    e(f"""s_mul_i32 s48, s38, 10240
    s_cmp_eq_u32 s38, 3
    s_cselect_b32 s49, 1024, 0
    s_sub_u32 s48, s48, s49
    v_lshl_add_u32 v5, v1, 4, s48
    s_mul_i32 s48, s36, {4*AOT}
    v_add_u32 v6, s48, v5
    s_mul_i32 s48, s37, {4*AOT}
    v_add_u32 v7, s48, v5
    s_cmp_ge_u32 s38, 2
    s_cselect_b32 s58, 0x40000000, 0""")
    for i in range(4): e(f"s_mov_b32 s{50+i}, {i*AOT}\ns_add_u32 s{54+i}, s58, {i*AOT}")
    def loads(i):
        b = ST + 32 * (i % NST); L = []; so = 54 if i == 9 else 50
        if i % 4 == 0 and i: L.append("v_add_u32 v6, 0x1000, v6\nv_add_u32 v7, 0x1000, v7")
        for j in range(4):
            L.append(f"buffer_load_dwordx4 {vr(b+4*j,4)}, v6, s[20:23], s{so+j} offen offset:{1024*(i%4)}")
            L.append(f"buffer_load_dwordx4 {vr(b+16+4*j,4)}, v7, s[24:27], s{so+j} offen offset:{1024*(i%4)}")
        vm.op(i, 8)
        return L
    def mf(i):
        b = ST + 32 * (i % NST); L = []
        for c in range(4):
            for j in range(4):
                d = ar((j * 4 + c) * 4, 4)
                L.append(f"v_mfma_f32_16x16x32_bf16 {d}, {vr(b+16+4*c,4)}, {vr(b+4*j,4)}, {'0' if i==0 else d}")
        return L
    for i in range(NST - 1):
        for l in loads(i): e(l)
    e(f"""s_lshl_b32 s48, s36, 6
    s_lshl_b32 s49, s38, 4
    s_add_u32 s48, s48, s49
    v_add_u32 v12, s48, v2
    v_lshlrev_b32 v12, 10, v12
    s_lshl_b32 s49, s37, 7
    v_lshl_add_u32 v15, v3, 3, s49
    v_add_u32 v12, v12, v15""")
    for c in range(4): e(f"buffer_load_dwordx2 {vr(16+2*c,2)}, v12, s[28:31], 0 offen offset:{32*c}")
    vm.op("x", 4)
    for i in range(10):
        if i == 0: TM(e, 1, 24)
        e(f"s_waitcnt vmcnt({vm.w(i)})")
        if i in (0, 5): TM(e, 2 + i // 5, 24)
        interleave(e, mf(i), loads(i + NST - 1) if i + NST - 1 < 10 else [], 1)
    TM(e, 4, 24)
    reduce_tiles(e, 4, 0, 64)
    TM(e, 5, 24)
    e("s_mov_b32 s56, 0xffff0000")
    for c in range(4):
        for h in range(2):
            e(f"v_lshlrev_b32 v{28+2*h}, 16, v{16+2*c+h}\nv_and_b32 v{29+2*h}, s56, v{16+2*c+h}")
        for h in range(2): e(f"v_pk_add_f32 {vr(64+4*c+2*h,2)}, {vr(64+4*c+2*h,2)}, {vr(28+2*h,2)}")
        e(f"v_cvt_pk_bf16_f32 v{16+2*c}, v{64+4*c}, v{65+4*c}\nv_cvt_pk_bf16_f32 v{17+2*c}, v{66+4*c}, v{67+4*c}")
        e(f"buffer_store_dwordx2 {vr(16+2*c,2)}, v12, s[32:35], 0 offen offset:{32*c}")
    e.label("p3_kernel_exit"); TEND(e, 24, 2); e("s_endpgm")
```

```python
import sys
from common import *
import p1, p23
hdr = [l for l in open(f"cdna_kernels/{NAME}.s.ref").read().split("\n") if l.startswith(";") and "@launch" not in l]
e = E()
p1.gen(e); p23.gen_p2(e); p23.gen_p3(e)
out = "\n".join(hdr) + "\n"
out += "; @launch kernel=p1_kernel grid=(256,1,1) block=(256,1,1) lds=131072\n"
out += "; @launch kernel=p2_kernel grid=(256,1,1) block=(256,1,1) lds=117248\n"
out += "; @launch kernel=p3_kernel grid=(256,1,1) block=(256,1,1) lds=65536\n"
out += '.amdgcn_target "amdgcn-amd-amdhsa--gfx950"\n.text\n' + e.text() + 'code_end:\n    s_endpgm\n'
out += '.section .rodata,"a"\n' + desc("p1_kernel", 288, 256) + desc("p2_kernel", 392, 256) + desc("p3_kernel", 320, 256)
open(sys.argv[1] if len(sys.argv) > 1 else f"cdna_kernels/{NAME}.s", "w").write(out)
```

```python
from common import *
ACC = 160; F = [80, 120]; M = 0; AB = 8192; BB = 57344
def acc(j, c): return ACC + (j * 6 + c) * 4

def softmax4(e, P, T, O):
    a = [T + t for t in range(4)]; b = [T + 4 + t for t in range(4)]
    em = [T + 8 + 4 * t for t in range(4)]
    def red(op):
        for t in range(4): e(f"v_permlane32_swap_b32 v{a[t]}, v{b[t]}")
        for t in range(4): e(f"{op} v{a[t]}, v{a[t]}, v{b[t]}")
        for t in range(4): e(f"v_mov_b32 v{b[t]}, v{a[t]}")
        for t in range(4): e(f"v_permlane16_swap_b32 v{a[t]}, v{b[t]}")
        for t in range(4): e(f"{op} v{a[t]}, v{a[t]}, v{b[t]}")
        for t in range(4): e(f"v_mov_b32 v{b[t]}, v{a[t]}")
        for t in range(4): e(f"v_permlane32_swap_b32 v{a[t]}, v{b[t]}")
    for t in range(4): e(f"v_max3_f32 v{a[t]}, v{P[t]}, v{P[t]+1}, v{P[t]+2}")
    for t in range(4): e(f"v_max3_f32 v{b[t]}, -v{P[t]}, -v{P[t]+1}, -v{P[t]+2}")
    for t in range(4): e(f"v_max_f32 v{a[t]}, v{a[t]}, v{P[t]+3}")
    for t in range(4): e(f"v_max_f32_e64 v{b[t]}, v{b[t]}, -v{P[t]+3}")
    red("v_max_f32")
    for t in range(4): e(f"v_mul_f32 v{a[t]}, s52, v{a[t]}")
    for t in range(4): e(f"v_mul_f32 v{b[t]}, s52, v{b[t]}")
    for t in range(4):
        for i in range(4): e(f"v_fma_f32 v{em[t]+i}, v{P[t]+i}, s52, v{b[t]}")
    for t in range(4):
        for i in range(4): e(f"v_fma_f32 v{P[t]+i}, v{P[t]+i}, s51, v{a[t]}")
    for t in range(4):
        for i in range(4): e(f"v_exp_f32 v{em[t]+i}, v{em[t]+i}")
    for t in range(4):
        for i in range(4): e(f"v_exp_f32 v{P[t]+i}, v{P[t]+i}")
    for t in range(4): e(f"v_add_f32 v{b[t]}, v{em[t]}, v{em[t]+1}")
    for t in range(4): e(f"v_add_f32 v{a[t]}, v{P[t]}, v{P[t]+1}")
    for t in range(4): e(f"v_add_f32 v{b[t]}, v{b[t]}, v{em[t]+2}")
    for t in range(4): e(f"v_add_f32 v{a[t]}, v{a[t]}, v{P[t]+2}")
    for t in range(4): e(f"v_add_f32 v{b[t]}, v{b[t]}, v{em[t]+3}")
    for t in range(4): e(f"v_add_f32 v{a[t]}, v{a[t]}, v{P[t]+3}")
    e("s_nop 0")
    red("v_add_f32")
    for t in range(4): e(f"v_rcp_f32 v{a[t]}, v{a[t]}")
    for t in range(4): e(f"v_rcp_f32 v{b[t]}, v{b[t]}")
    for t in range(4):
        for i in range(4): e(f"v_mul_f32 v{P[t]+i}, v{P[t]+i}, v{a[t]}")
    for t in range(4):
        for i in range(4): e(f"v_mul_f32 v{em[t]+i}, v{em[t]+i}, v{b[t]}")
    for t in range(4):
        e(f"v_cvt_pk_bf16_f32 v{O[t]}, v{P[t]}, v{P[t]+1}")
        e(f"v_cvt_pk_bf16_f32 v{O[t]+1}, v{P[t]+2}, v{P[t]+3}")
        e(f"v_cvt_pk_bf16_f32 v{O[t]+2}, v{em[t]}, v{em[t]+1}")
        e(f"v_cvt_pk_bf16_f32 v{O[t]+3}, v{em[t]+2}, v{em[t]+3}")

def gelu(e, regs, tmp):
    n = len(regs)
    for i in range(n): e(f"v_mul_f32 v{tmp+i}, v{regs[i]}, v{regs[i]}")
    for i in range(n): e(f"v_fma_f32 v{tmp+i}, v{tmp+i}, s54, v79")
    for i in range(n): e(f"v_mul_f32 v{tmp+i}, v{tmp+i}, v{regs[i]}")
    for i in range(n): e(f"v_exp_f32 v{tmp+i}, v{tmp+i}")
    for i in range(n): e(f"v_add_f32 v{tmp+i}, 1.0, v{tmp+i}")
    for i in range(n): e(f"v_rcp_f32 v{tmp+i}, v{tmp+i}")
    for i in range(n): e(f"v_mul_f32 v{regs[i]}, v{regs[i]}, v{tmp+i}")

def pref(e):
    if 'A' not in X: return
    srd(e, 76, 70, 0, 2048 * 4096)
    e("v_lshlrev_b32 v31, 4, v0\ns_lshl_b32 s68, s2, 15")
    for i in range(8): e(f"buffer_load_dwordx4 a[28:31], v31, s[76:79], s68 offen\ns_add_u32 s68, s68, 4096")
    e("s_lshl_b32 s68, s2, 12")
    srd(e, 76, 72, 0, 512 * 1024); e("buffer_load_dwordx4 a[28:31], v31, s[76:79], s68 offen")
    srd(e, 80, 74, 0, 688 * 1024); e("buffer_load_dwordx4 a[28:31], v31, s[80:83], s68 offen")

def variant(e, kind):
    qkv = kind == "qkv"
    stride = 3072 if qkv else 2752
    S1 = 512 if qkv else 64
    T = [True, True, False] * 2 if qkv else ([True] * 6 if kind == "z1" else [False] * 6)
    e.label(f"P1_{kind}")
    if qkv:
        srd(e, 28, 12, WS_PHIQ, 2048 * 2048); srd(e, 32, 12, WS_KVP, 32 * 16 * 544 * 4)
    elif kind == "z2":
        srd(e, 28, 12, WS_Z2T, 43 * 65536); srd(e, 32, 12, WS_STATS, 4 * 2048 * 8)
    else:
        srd(e, 28, 12, WS_Z1, 128 * 44 * 512)
    def dma(st, noa=False):
        L = []
        sl = st % 3
        L.append(f"s_movk_i32 s46, {st*128}")
        L.append(f"s_mov_b32 s47, {st*64*stride}")
        for jj in range(0 if noa else 4):
            L.append(f"s_add_u32 m0, s55, {AB + sl*16384 + jj*1024}")
            L.append(f"s_nop 0\nbuffer_load_dwordx4 v{4+jj}, s[16:19], s46 offen lds")
        for jj in range(6):
            L.append(f"s_add_u32 m0, s56, {BB + sl*24576 + jj*1024}")
            L.append(f"s_nop 0\nbuffer_load_dwordx4 v{8+jj}, s[20:23], s47 offen lds")
        return L
    def reads(st, ks, f):
        sl = st % 3; L = []
        for j in range(4):
            L.append(f"ds_read_b128 {vr(F[f]+4*j,4)}, v{14+(j>>1)*2+ks} offset:{sl*16384+(j&1)*2048}")
        for c in range(6):
            for hh in range(2):
                L.append(f"ds_read_b64_tr_b16 {vr(F[f]+16+4*c+2*hh,2)}, v{18+c} offset:{sl*24576+ks*12288+hh*1536}")
        return L
    def mfmas(f, first):
        L = []
        for c in range(6):
            for j in range(4):
                a = vr(F[f] + 4 * j, 4); b = vr(F[f] + 16 + 4 * c, 4); d = vr(acc(j, c), 4)
                x, y = (b, a) if T[c] else (a, b)
                L.append(f"v_mfma_f32_16x16x32_bf16 {d}, {x}, {y}, {'0' if first else d}")
        return L
    def stats(f, first=False):
        L = []
        def m(d, x, y): L.append(f"v_mfma_f32_16x16x32_bf16 {ar(d,4)}, {x}, {y}, {'0' if first else ar(d,4)}")
        for j in range(2):
            r = vr(F[f] + 4 * j, 4)
            m(4 * j, "v[24:27]", r); m(8 + 4 * j, r, r)
        for c in range(3): m(16 + 4 * c, "v[24:27]", vr(F[f] + 16 + 4 * c, 4))
        return L
    TM(e, 1, 31)
    TM(e, 2, 31)
    e("s_waitcnt vmcnt(12) lgkmcnt(0)\ns_barrier")
    TM(e, 3, 31)
    for l in reads(0, 0, 0): e(l)
    for it in range(8):
        if it == 4: TM(e, 4, 31)
        e("s_waitcnt lgkmcnt(0)")
        interleave(e, mfmas(0, it == 0) + stats(0, it == 0), reads(it, 1, 1), 1)
        if it < 7:
            e(f"s_waitcnt vmcnt({6 if it == 0 else 10 if it < 6 else 0}) lgkmcnt(0)\ns_barrier")
            fill = reads(it + 1, 0, 0) + (dma(it + 3) if it + 3 < 8 else [])
        else:
            e("s_waitcnt lgkmcnt(0)"); fill = []
        interleave(e, stats(1) + mfmas(1, False), fill, 2)
    TM(e, 5, 31)
    e(f"""s_lshl_b32 s48, s39, 8
    s_lshl_b32 s49, s40, 7
    s_add_u32 s48, s48, s49
    v_lshl_add_u32 v40, v2, 2, s48
    s_lshl_b32 s48, s40, 7
    s_lshl_b32 s49, s39, 6
    s_add_u32 s59, s48, s49
    s_xor_b32 s60, s59, 64
    v_lshl_add_u32 v41, v2, 2, s59
    s_mov_b64 exec, 0xffff
    ds_write_b32 v40, a0 offset:{M}
    ds_write_b32 v40, a4 offset:{M+64}
    ds_write_b32 v41, a16 offset:{M+1024}
    ds_write_b32 v41, a20 offset:{M+1024+256}
    ds_write_b32 v41, a24 offset:{M+1024+512}""")
    for i in range(4):
        e(f"s_mov_b32 exec_lo, {0x00100001<<i}\ns_mov_b32 exec_hi, {0x10000100<<i}\nds_write_b32 v40, a{8+i} offset:{M+512}\nds_write_b32 v40, a{12+i} offset:{M+512+64}")
    e(f"""s_mov_b64 exec, -1
    s_waitcnt lgkmcnt(0)
    s_barrier
    v_and_b32 v40, 127, v0
    v_lshlrev_b32 v40, 2, v40
    ds_read_b32 v41, v40 offset:{M}
    ds_read_b32 v42, v40 offset:{M+512}
    s_waitcnt lgkmcnt(0)
    v_mul_f32 v41, {f2u(1/512)}, v41
    v_mul_f32 v42, {f2u(1/512)}, v42
    v_fma_f32 v42, -v41, v41, v42
    v_max_f32 v42, 0, v42
    v_add_f32 v42, {f2u(1e-5)}, v42
    v_rsq_f32 v42, v42
    s_nop 0
    v_mul_f32 v41, v41, v42
    ds_write_b32 v40, v42 offset:{M+2048}
    ds_write_b32 v40, v41 offset:{M+2560}
    s_waitcnt lgkmcnt(0)
    s_barrier""")
    TM(e, 6, 31)
    e(f"""s_lshl_b32 s48, s39, 8
    s_lshl_b32 s49, s40, 7
    s_add_u32 s57, s48, s49
    s_xor_b32 s58, s57, 128
    v_lshl_add_u32 v40, v2, 2, s57
    v_lshl_add_u32 v41, v2, 2, s58
    v_lshl_add_u32 v42, v3, 4, s57
    v_lshl_add_u32 v43, v3, 4, s58
    v_lshl_add_u32 v44, v3, 4, s59
    v_lshl_add_u32 v45, v3, 4, s60
    v_lshl_add_u32 v46, v2, 2, s59
    v_lshl_add_u32 v47, v2, 2, s60""")
    PT = lambda j: 80 + 2 * j
    RN = lambda j: 88 + 4 * j
    RMN = lambda j: 104 + 4 * j
    CS = lambda c: 120 + 4 * c
    for j in range(4):
        if any(T):
            e(f"ds_read_b32 v{PT(j)}, v{40+(j>>1)} offset:{M+2048+(j&1)*64}")
            e(f"ds_read_b32 v{PT(j)+1}, v{40+(j>>1)} offset:{M+2560+(j&1)*64}")
        if not all(T):
            e(f"ds_read_b128 {vr(RN(j),4)}, v{42+(j>>1)} offset:{M+2048+(j&1)*64}")
            e(f"ds_read_b128 {vr(RMN(j),4)}, v{42+(j>>1)} offset:{M+2560+(j&1)*64}")
    for c in range(6):
        if T[c]: e(f"ds_read_b128 {vr(CS(c),4)}, v{44+c//3} offset:{M+1024+(c%3)*256}")
        else: e(f"ds_read_b32 v{CS(c)}, v{46+c//3} offset:{M+1024+(c%3)*256}")
    e("s_waitcnt lgkmcnt(0)")
    for c in range(6):
        for h in range(2):
            for j in range(4):
                t = vr(144 + 4 * j + 2 * h, 2)
                if T[c]: e(f"v_pk_mul_f32 {t}, {vr(CS(c)+2*h,2)}, {vr(PT(j),2)} op_sel:[0,1] op_sel_hi:[1,1]")
                else: e(f"v_pk_mul_f32 {t}, {vr(RMN(j)+2*h,2)}, {vr(CS(c),2)} op_sel_hi:[1,0]")
            for j in range(4):
                t = vr(144 + 4 * j + 2 * h, 2); d = vr(acc(j, c) + 2 * h, 2)
                if T[c]: e(f"v_pk_fma_f32 {d}, {d}, {vr(PT(j),2)}, {t} op_sel_hi:[1,0,1] neg_lo:[0,0,1] neg_hi:[0,0,1]")
                else: e(f"v_pk_fma_f32 {d}, {d}, {vr(RN(j)+2*h,2)}, {t} neg_lo:[0,0,1] neg_hi:[0,0,1]")
    TM(e, 7, 31)
    e("""s_lshl_b32 s48, s36, 7
    s_lshr_b32 s61, s57, 2
    s_lshr_b32 s62, s58, 2
    s_add_u32 s61, s61, s48
    s_add_u32 s62, s62, s48""")
    if qkv:
        for p in range(2):
            e(f"s_lshl_b32 s48, s{61+p}, 11\nv_lshl_add_u32 v{48+p}, v1, 4, s48")
        e("s_waitcnt vmcnt(0)"); pref(e)
        for i in range(4): e(f"v_lshl_or_b32 v{32+i}, v{68+i}, 16, v{32+i}")
        for hs in range(2):
            e(f"s_xor_b32 s48, s39, {hs}\ns_lshl_b32 s49, s40, 1\ns_add_u32 s48, s48, s49\ns_lshl_b32 s49, s37, 2\ns_add_u32 s63, s48, s49\ns_lshl_b32 s64, s63, 10\ns_add_u32 s65, s64, 32768")
            W = vr(32 + 2 * hs, 2)
            TM(e, 8 + hs, 31)
            KV = 52
            for qk in range(2):
                c = 3 * hs + qk
                for j in range(4):
                    e(f"v_cvt_pk_bf16_f32 v{80+2*j}, v{acc(j,c)}, v{acc(j,c)+1}\nv_cvt_pk_bf16_f32 v{81+2*j}, v{acc(j,c)+2}, v{acc(j,c)+3}")
                e("s_nop 1")
                for j in range(4):
                    e(f"v_mfma_f32_16x16x16_bf16 {vr(88+4*j,4)}, {W}, {vr(80+2*j,2)}, 0")
                e("s_nop 7")
                O = [acc(j, c) for j in range(4)]
                softmax4(e, [88 + 4 * j for j in range(4)], 104, O)
                if qk == 0:
                    for j in range(4):
                        e(f"buffer_store_dwordx4 {vr(O[j],4)}, v{48+(j>>1)}, s[28:31], s{64+(j&1)} offen")
                else:
                    e("s_nop 1")
                    for j in range(4):
                        e(f"v_mfma_f32_16x16x16_bf16 {vr(80+8*j,4)}, {vr(O[j],2)}, v[36:37], 0")
                        e(f"v_mfma_f32_16x16x16_bf16 {vr(84+8*j,4)}, {vr(O[j]+2,2)}, v[36:37], 0")
                    cv = 3 * hs + 2
                    for j in range(4):
                        e(f"v_cvt_pk_bf16_f32 v{112+2*j}, v{acc(j,cv)}, v{acc(j,cv)+1}\nv_cvt_pk_bf16_f32 v{113+2*j}, v{acc(j,cv)+2}, v{acc(j,cv)+3}")
                    for j in range(4):
                        for s in range(2):
                            b = 80 + 8 * j + 4 * s
                            e(f"v_cvt_pk_bf16_f32 v{O[j]+2*s}, v{b}, v{b+1}\nv_cvt_pk_bf16_f32 v{O[j]+2*s+1}, v{b+2}, v{b+3}")
                    e("s_nop 1")
                    for j in range(4):
                        for s in range(2):
                            d = vr(KV + 4 * s, 4); dz = vr(KV + 8 + 4 * s, 4)
                            e(f"v_mfma_f32_16x16x16_bf16 {d}, {vr(O[j]+2*s,2)}, {vr(112+2*j,2)}, {'0' if j==0 else d}")
                            e(f"v_mfma_f32_16x16x16_bf16 {dz}, {vr(O[j]+2*s,2)}, v[38:39], {'0' if j==0 else dz}")
                    e("s_nop 7")
                    e(f"""s_and_b32 s48, s63, 3
                    s_lshl_b32 s48, s48, 13
                    s_lshl_b32 s49, s39, 12
                    s_add_u32 s48, s48, s49
                    v_lshl_add_u32 v50, v1, 4, s48""")
                    for q in range(4): e(f"ds_write_b128 v50, {vr(KV+4*q,4)} offset:{AB+q*1024}")
        TM(e, 10, 31)
        e(f"""s_waitcnt lgkmcnt(0)
        s_barrier
        s_lshl_b32 s48, s38, 13
        v_lshl_add_u32 v50, v1, 4, s48""")
        for q in range(8): e(f"ds_read_b128 {vr(80+4*q,4)}, v50 offset:{AB+q*1024}")
        e(f"""s_lshl_b32 s48, s37, 2
        s_add_u32 s48, s48, s38
        s_lshl_b32 s48, s48, 4
        s_add_u32 s48, s48, s36
        s_mul_i32 s48, s48, 2176
        v_lshlrev_b32 v51, 2, v2
        v_lshl_add_u32 v51, v3, 8, v51
        v_lshlrev_b32 v52, 4, v3
        s_waitcnt lgkmcnt(0)""")
        for i in range(16): e(f"v_add_f32 v{80+i}, v{80+i}, v{96+i}")
        for s in range(2):
            for i in range(4): e(f"buffer_store_dword v{80+4*s+i}, v51, s[32:35], s48 offen offset:{s*1024+i*64}")
        e("v_cmp_eq_u32 vcc, 0, v2\ns_and_saveexec_b64 s[66:67], vcc")
        for s in range(2): e(f"buffer_store_dwordx4 {vr(88+4*s,4)}, v52, s[32:35], s48 offen offset:{2048+s*64}")
        TEND(e, 31, 0, 12); e("s_endpgm")
        return
    pref(e)
    e(f"v_mov_b32 v79, {f2u(-2*0.7978845608028654*LOG2E)}\ns_cmp_eq_u32 s53, 3\ns_cselect_b32 s63, 10, 11")
    if kind == "z1":
        for p in range(2):
            e(f"s_mul_i32 s48, s{61+p}, 1408\nv_lshl_add_u32 v{48+p}, v1, 3, s48")
    else:
        for p in range(2):
            e(f"s_lshl_b32 s48, s{61+p}, 5\nv_lshl_add_u32 v{48+p}, v1, 4, s48")
        for i in range(32): e(f"v_mov_b32 v{112+i}, 0")
    for c in range(6):
        e(f"s_lshr_b32 s48, s{59+c//3}, 6\ns_add_u32 s48, s48, {(c%3)*4}\ns_cmp_ge_u32 s48, s63\ns_cbranch_scc1 P1_{kind}_skip{c}")
        e(f"s_mul_i32 s49, s53, 11\ns_add_u32 s48, s48, s49")
        regs = [acc(j, c) + i for j in range(4) for i in range(4)]
        gelu(e, regs, 80)
        for j in range(4):
            e(f"v_cvt_pk_bf16_f32 v{96+2*j}, v{acc(j,c)}, v{acc(j,c)+1}\nv_cvt_pk_bf16_f32 v{97+2*j}, v{acc(j,c)+2}, v{acc(j,c)+3}")
        if kind == "z1":
            e(f"s_lshl_b32 s64, s48, 9\ns_add_u32 s65, s64, {44*512}")
            for j in range(4): e(f"buffer_store_dwordx2 {vr(96+2*j,2)}, v{48+(j>>1)}, s[28:31], s{64+(j&1)} offen")
        else:
            e(f"s_lshl_b32 s64, s48, 16")
            for p in range(2): e(f"buffer_store_dwordx4 {vr(96+4*p,4)}, v{48+p}, s[28:31], s64 offen")
            for j in range(4):
                for h in range(2):
                    e(f"v_lshlrev_b32 v{80+4*j+2*h}, 16, v{96+2*j+h}\nv_and_b32 v{81+4*j+2*h}, 0xffff0000, v{96+2*j+h}")
            for k in range(8):
                e(f"v_pk_add_f32 {vr(112+2*k,2)}, {vr(112+2*k,2)}, {vr(80+2*k,2)}")
                e(f"v_pk_fma_f32 {vr(128+2*k,2)}, {vr(80+2*k,2)}, {vr(80+2*k,2)}, {vr(128+2*k,2)}")
        e.label(f"P1_{kind}_skip{c}")
    TM(e, 10, 31)
    if kind == "z2":
        e("s_nop 1")
        for sh in (8, 4, 2, 1):
            for i in range(32): e(f"v_add_f32_dpp v{112+i}, v{112+i}, v{112+i} row_ror:{sh} row_mask:0xf bank_mask:0xf")
        e("v_cmp_eq_u32 vcc, 0, v2\ns_and_saveexec_b64 s[66:67], vcc")
        for j in range(4):
            for i in range(4):
                e(f"ds_add_f32 v{42+(j>>1)}, v{112+4*j+i} offset:{M+3072+(j&1)*64+4*i}")
                e(f"ds_add_f32 v{42+(j>>1)}, v{128+4*j+i} offset:{M+3584+(j&1)*64+4*i}")
        e(f"""s_mov_b64 exec, s[66:67]
        s_waitcnt lgkmcnt(0)
        s_barrier
        v_and_b32 v40, 127, v0
        v_lshlrev_b32 v41, 2, v40
        ds_read_b32 v42, v41 offset:{M+3072}
        ds_read_b32 v43, v41 offset:{M+3584}
        s_lshl_b32 s48, s53, 11
        s_lshl_b32 s49, s36, 7
        s_add_u32 s48, s48, s49
        s_lshl_b32 s48, s48, 3
        v_lshlrev_b32 v41, 3, v40
        s_waitcnt lgkmcnt(0)
        buffer_store_dwordx2 v[42:43], v41, s[32:35], s48 offen""")
    TEND(e, 31, 0, 12); e("s_endpgm")

def gen(e):
    kernel_begin(e, "p1_kernel")
    e(f"""s_cmp_ge_u32 s2, 256
    s_cbranch_scc1 P1_exit
    s_load_dwordx4 s[4:7], s[0:1], 0
    s_load_dwordx2 s[8:9], s[0:1], 16
    s_load_dwordx2 s[10:11], s[0:1], 40
    s_load_dwordx2 s[12:13], s[0:1], 88
    s_load_dwordx2 s[70:71], s[0:1], 48
    s_load_dwordx2 s[72:73], s[0:1], 24
    s_load_dwordx2 s[74:75], s[0:1], 64
    v_lshrrev_b32 v40, 6, v0
    v_and_b32 v1, 63, v0
    v_readfirstlane_b32 s38, v40
    v_and_b32 v2, 15, v0
    v_bfe_u32 v3, v0, 4, 2
    s_and_b32 s48, s2, 1
    s_lshl_b32 s48, s48, 3
    s_bfe_u32 s37, s2, 0x30003
    s_add_u32 s37, s37, s48
    s_bfe_u32 s48, s2, 0x20001
    s_lshl_b32 s48, s48, 2
    s_lshr_b32 s36, s2, 6
    s_add_u32 s36, s36, s48
    s_lshr_b32 s39, s38, 1
    s_and_b32 s40, s38, 1
    s_mov_b32 s50, 0x3f803f80
    s_mov_b32 s51, {f2u(LOG2E)}
    s_mov_b32 s52, {f2u(-LOG2E)}
    s_mov_b32 s54, {f2u(-2*0.7978845608028654*LOG2E*0.044715)}
    s_lshl_b32 s55, s38, 12
    s_mul_i32 s56, s38, 6144
    v_mov_b32 v40, 0
    v_mov_b32 v41, 0
    v_mov_b32 v42, 0
    v_mov_b32 v43, 0
    v_lshlrev_b32 v44, 4, v0
    ds_write_b128 v44, v[40:43] offset:{M}""")
    TM(e, 0, 31)
    if 'B' in X:
        e("s_getpc_b64 s[80:81]"); e.label("P1_pc")
        e(f"s_mov_b32 s82, code_end-P1_pc\ns_mov_b32 s83, 0x00020000\ns_lshr_b32 s48, s2, 3\ns_lshl_b32 s48, s48, 12\nbuffer_load_dwordx4 a[28:31], v44, s[80:83], s48 offen")
    for i in range(24, 28): e(f"v_mov_b32 v{i}, s50")
    e(f"""s_lshl_b32 s48, s36, 7
    s_lshl_b32 s49, s38, 5
    s_add_u32 s48, s48, s49
    v_lshrrev_b32 v40, 3, v1
    v_and_b32 v41, 7, v1
    v_xor_b32 v41, v41, v40
    v_add_u32 v40, s48, v40
    v_lshlrev_b32 v40, 10, v40
    v_lshl_add_u32 v4, v41, 4, v40
    v_add_u32 v5, 8192, v4
    v_add_u32 v6, 16384, v4
    v_add_u32 v7, 24576, v4
    s_movk_i32 s68, 3072
    s_movk_i32 s69, 512
    s_lshl_b32 s44, s37, 6
    s_cmp_lt_u32 s37, 8
    s_cbranch_scc1 P1_par
    s_movk_i32 s68, 2752
    s_movk_i32 s69, 64
    s_and_b32 s53, s37, 3
    s_mul_i32 s44, s53, 176
    s_cmp_lt_u32 s37, 12
    s_cbranch_scc1 P1_par
    s_add_u32 s44, s44, 688""")
    e.label("P1_par")
    e("s_lshl_b32 s67, s68, 3\ns_add_u32 s67, s67, 64\ns_mul_i32 s48, s38, 384\ns_movk_i32 s49, 2731")
    for jj in range(3):
        e(f"""v_add_u32 v40, s48, v1
        v_add_u32 v40, {64*jj}, v40
        v_mul_lo_u32 v41, v40, s49
        v_lshrrev_b32 v41, 16, v41
        v_mul_u32_u24 v42, 24, v41
        v_sub_u32 v42, v40, v42
        v_bfe_u32 v43, v41, 1, 1
        v_lshrrev_b32 v44, 1, v42
        v_xor_b32 v44, v44, v43
        v_and_b32 v42, 1, v42
        v_lshrrev_b32 v45, 2, v44
        v_and_b32 v46, 3, v44
        v_lshlrev_b32 v46, 4, v46
        v_mul_u32_u24 v45, s69, v45
        v_add3_u32 v45, v45, v46, s44
        v_lshlrev_b32 v45, 1, v45
        v_lshl_add_u32 v45, v42, 4, v45
        v_mul_u32_u24 v41, s68, v41
        v_add_u32 v{8+jj}, v41, v45
        v_and_b32 v47, 2, v44
        v_lshlrev_b32 v47, 6, v47
        v_sub_u32 v47, s67, v47
        v_add_u32 v{11+jj}, v{8+jj}, v47""")
    e("s_waitcnt lgkmcnt(0)")
    srd(e, 16, 4, 0, 2048 * 1024)
    for st in range(3):
        e(f"s_movk_i32 s46, {st*128}")
        for jj in range(4): e(f"s_add_u32 m0, s55, {AB + st*16384 + jj*1024}\ns_nop 0\nbuffer_load_dwordx4 v{4+jj}, s[16:19], s46 offen lds")
    e("s_cmp_ge_u32 s37, 8\ns_cbranch_scc1 P1_bz")
    srd(e, 20, 6, 0, 512 * 3072)
    srd(e, 24, 8, 0, 32 * 512)
    e("v_lshlrev_b32 v40, 1, v2\nv_lshl_add_u32 v40, v3, 7, v40")
    for hs in range(2):
        e(f"s_xor_b32 s48, s39, {hs}\ns_lshl_b32 s49, s40, 1\ns_add_u32 s48, s48, s49\ns_lshl_b32 s49, s37, 2\ns_add_u32 s48, s48, s49\ns_lshl_b32 s48, s48, 9")
        for h in range(2):
            e(f"buffer_load_ushort v{32+2*hs+h}, v40, s[24:27], s48 offen offset:{64*h}")
            e(f"buffer_load_ushort v{68+2*hs+h}, v40, s[24:27], s48 offen offset:{64*h+32}")
    e("s_branch P1_bj"); e.label("P1_bz")
    srd(e, 20, 10, 0, 512 * 2752)
    e.label("P1_bj")
    for st in range(3):
        e(f"s_mul_i32 s47, s68, {st*64}")
        for jj in range(6): e(f"s_add_u32 m0, s56, {BB + st*24576 + jj*1024}\ns_nop 0\nbuffer_load_dwordx4 v{8+jj}, s[20:23], s47 offen lds")
    e(f"""    v_and_b32 v40, 7, v2
    v_xor_b32 v40, v40, v3
    v_lshlrev_b32 v40, 4, v40
    v_lshl_add_u32 v40, v2, 7, v40
    s_lshl_b32 s48, s39, 13
    s_lshl_b32 s49, s40, 12
    s_add_u32 s48, s48, s49
    s_add_u32 s48, s48, {AB}
    v_add_u32 v14, s48, v40
    v_xor_b32 v15, 64, v14
    v_xor_b32 v16, 4096, v14
    v_xor_b32 v17, 4096, v15
    v_lshrrev_b32 v40, 2, v2
    v_lshl_add_u32 v40, v3, 3, v40
    v_mul_u32_u24 v40, 384, v40
    v_and_b32 v41, 3, v2
    v_lshl_add_u32 v40, v41, 3, v40
    v_add_u32 v40, {BB}, v40
    v_lshrrev_b32 v41, 3, v2
    v_and_b32 v42, 1, v3
    v_lshl_or_b32 v41, v42, 1, v41
    s_lshl_b32 s48, s40, 1""")
    for c in range(6):
        e(f"s_xor_b32 s57, s39, {c//3}\ns_add_u32 s57, s57, {(c%3)*4}\ns_add_u32 s57, s57, s48\nv_xor_b32 v42, s57, v41\nv_lshl_add_u32 v{18+c}, v42, 5, v40")
    e(f"""v_lshlrev_b32 v40, 2, v3
    v_sub_u32 v40, v2, v40
    v_mov_b32 v41, 0x3f80
    v_mov_b32 v42, 0x3f800000
    v_mov_b32 v38, s50
    v_mov_b32 v39, s50""")
    for r, (a, b) in ((36, (0, 1)), (37, (2, 3))):
        e(f"v_cmp_eq_u32 vcc, {a}, v40\nv_cmp_eq_u32 s[66:67], {b}, v40\ns_nop 1\nv_cndmask_b32 v{r}, 0, v41, vcc\nv_cndmask_b32 v{r}, v{r}, v42, s[66:67]")
    e("s_cmp_ge_u32 s37, 12\ns_cbranch_scc1 P1_z2\ns_cmp_ge_u32 s37, 8\ns_cbranch_scc1 P1_z1")
    variant(e, "qkv"); variant(e, "z1"); variant(e, "z2")
    e.label("P1_exit"); e("s_endpgm")
```
